```python
import torch

def _softmax(x, axis=-1):
    return torch.softmax(x, dim=axis)
def _gelu(x):
    return torch.nn.functional.gelu(x, approximate="tanh")
def _silu(x):
    return torch.nn.functional.silu(x)
def _sigmoid(x):
    return torch.sigmoid(x)
def _layernorm(x, axis=-1, eps=1e-5):
    m = x.mean(dim=axis, keepdim=True)
    v = x.var(dim=axis, keepdim=True, unbiased=False)
    return (x - m) / torch.sqrt(v + eps)
def _scatter_add(tgt, idx, src, axis=0):
    return tgt.clone().index_add_(axis, idx, src)
def _segment_sum(src, seg, n):
    out = torch.zeros((n,) + src.shape[1:], dtype=src.dtype)
    return out.index_add_(0, seg, src)
def _pad(x, pw):
    flat = tuple(v for pair in reversed(pw) for v in pair)
    return torch.nn.functional.pad(x, flat)

kernel_name = 'parallel_sum__sliding_block_cached__glu_gated_swiglu__decode'

def setup_inputs():

    _w = (lambda a: (lambda t: t.to(torch.bfloat16) if t.is_floating_point() else t)(torch.as_tensor(a)))
    def _A_setup():
        B, Sq, D = 2, 1, 512
        Hq, Hkv, Sk, Dh = 32, 32, 16384, 128
        assert Hq % Hkv == 0, (Hq, Hkv)
        return {
            "x": _w((lambda *s: torch.randn(*s, dtype=torch.bfloat16) * 0.05)(B, Sq, D)),
            "k_cache": _w((lambda *s: torch.randn(*s, dtype=torch.bfloat16) * 1.6)(B, Hkv, Sk, Dh)),
            "v_cache": _w((lambda *s: torch.randn(*s, dtype=torch.bfloat16) * 0.8)(B, Hkv, Sk, Dh)),
            "wq": _w((lambda *s: torch.randn(*s, dtype=torch.bfloat16) * 1.6)(D, Hq * Dh) * (D ** -0.5)),
            "wo": _w((lambda *s: torch.randn(*s, dtype=torch.bfloat16) * 0.8)(Hq * Dh, D) * ((Hq * Dh) ** -0.5)),
        }
    _A_in = _A_setup()

    def _B_setup():
        B, S, D, F = 2, 1, 512, 1376
        return {
            "x": _w((lambda *s: torch.randn(*s, dtype=torch.bfloat16) * 0.05)(B, S, D)),
            "w1": _w((lambda *s: torch.randn(*s, dtype=torch.bfloat16) * 0.4)(D, F) * (2.0 / D) ** 0.5),
            "w3": _w((lambda *s: torch.randn(*s, dtype=torch.bfloat16) * 0.4)(D, F) * (2.0 / D) ** 0.5),
            "w2": _w((lambda *s: torch.randn(*s, dtype=torch.bfloat16) * 0.4)(F, D) * (2.0 / F) ** 0.5),
        }
    _B_in = _B_setup()

    return {
        "A_x": _A_in["x"],
        "A_k_cache": _A_in["k_cache"],
        "A_v_cache": _A_in["v_cache"],
        "A_wq": _A_in["wq"],
        "A_wo": _A_in["wo"],
        "B_x": _B_in["x"],
        "B_w1": _B_in["w1"],
        "B_w3": _B_in["w3"],
        "B_w2": _B_in["w2"],
    }

def reference(A_x, A_k_cache, A_v_cache, A_wq, A_wo, B_x, B_w1, B_w3, B_w2):
    def _A_ref(x, k_cache, v_cache, wq, wo):
        B, Sq, D = x.shape
        Hq, Dh = 32, 128
        Hkv, Sk = k_cache.shape[1], k_cache.shape[2]
        W = min(4096, max(256, Sk // 4))
        rep = Hq // Hkv
        q = (lambda x, *d: x.permute(*d))((x @ wq).reshape(B, Sq, Hq, Dh), 0, 2, 1, 3)
        k = (lambda x, n, axis: torch.repeat_interleave(x, n, dim=axis))(k_cache[:, :, Sk - W:, :], rep, axis=1)
        v = (lambda x, n, axis: torch.repeat_interleave(x, n, dim=axis))(v_cache[:, :, Sk - W:, :], rep, axis=1)
        scores = torch.einsum("bhqd,bhkd->bhqk", q, k) * (Dh ** -0.5)
        p = _softmax(scores, axis=-1)
        o = torch.einsum("bhqk,bhkd->bhqd", p, v)
        return (lambda x, *d: x.permute(*d))(o, 0, 2, 1, 3).reshape(B, Sq, Hq * Dh) @ wo

    def _B_ref(x, w1, w3, w2):
        gate = torch.einsum("bsd,df->bsf", x, w1)
        up = torch.einsum("bsd,df->bsf", x, w3)
        h = _silu(gate) * up
        out = torch.einsum("bsf,fd->bsd", h, w2)
        return out

    x = A_x
    xn = _layernorm(x, axis=-1)
    return x + _A_ref(xn, A_k_cache, A_v_cache, A_wq, A_wo) + _B_ref(xn, B_w1, B_w3, B_w2)
```

```python
NAME = "parallel_sum__sliding_block_cached__glu_gated_swiglu__decode"
HEADER = open("cdna_kernels/%s.s.ref" % NAME).read().split("; Override launch")[0]

class Asm:
    def __init__(self):
        self.l = []
    def __call__(self, s=""):
        for line in s.split("\n"):
            self.l.append("    " + line.strip() if line.strip() and not line.strip().endswith(":") else line.strip())
    def label(self, s):
        self.l.append(s + ":")
    def text(self):
        return "\n".join(self.l) + "\n"

def kernel_file(kernels, single=True):
    out = HEADER
    for k in kernels:
        if single:
            out += "; @launch grid=(%d,1,1) block=(%d,1,1) lds=%d\n" % (k["grid"], k["block"], k["lds"])
        else:
            out += "; @launch kernel=%s grid=(%d,1,1) block=(%d,1,1) lds=%d\n" % (k["name"], k["grid"], k["block"], k["lds"])
    out += '.amdgcn_target "amdgcn-amd-amdhsa--gfx950"\n.text\n'
    seen = set()
    for k in kernels:
        if k["name"] in seen: continue
        seen.add(k["name"])
        out += ".globl %s\n.p2align 8\n.type %s,@function\n%s:\n" % (k["name"], k["name"], k["name"])
        out += k["body"]
    out += '.section .rodata,"a"\n'
    seen = set()
    for k in kernels:
        if k["name"] in seen: continue
        seen.add(k["name"])
        out += ".p2align 6\n.amdhsa_kernel %s\n" % k["name"]
        out += "  .amdhsa_next_free_vgpr %d\n  .amdhsa_next_free_sgpr %d\n  .amdhsa_accum_offset %d\n" % (k["vgpr"], k["sgpr"], k["accum"])
        out += "  .amdhsa_group_segment_fixed_size 0\n  .amdhsa_kernarg_size 96\n  .amdhsa_user_sgpr_count 2\n"
        out += "  .amdhsa_user_sgpr_kernarg_segment_ptr 1\n  .amdhsa_system_sgpr_workgroup_id_x 1\n"
        out += k.get("extra_kd", "")
        out += ".end_amdhsa_kernel\n"
    return out
```

```python
import sys, struct
from asmlib import *

def f2u(x):
    return struct.unpack("<I", struct.pack("<f", x))[0]

class G(Asm):
    def __init__(self):
        super().__init__()
        self.vm = []
        self.done = -1
        self.maxout = 0
    def vmem(self, tag, text):
        self(text)
        self.vm.append(tag)
        self.maxout = max(self.maxout, len(self.vm) - 1 - self.done)
    def wait(self, tag):
        idx = max(i for i, t in enumerate(self.vm) if t == tag)
        if idx <= self.done:
            return
        n = len(self.vm) - 1 - idx
        if n <= 63:
            self("s_waitcnt vmcnt(%d)" % n)
        self.done = idx
    def waitall(self):
        self("s_waitcnt vmcnt(0)")
        self.done = len(self.vm) - 1

Y_OFF = 0
F_OFF = 0x80000
ML_OFF = 0x100000
WS_SIZE = 0x100800
STAMP_OFF = 0x20000000
L_XN = 0
L_QP = 4096
L_FP = 6144
L_MX = 8192
L_LS = 8256
L_H = 8320
L_OP = 8448
L_FIN = 9728
LDS_SIZE = 10752

def gen(fn, stamps=False, K0=16, WIN=32, nt="nt", mimic=True, dbg=None):
    a = G()
    sX, sK, sV, sWQ, sWO, sW1, sW3, sW2, sOUT, sDBG, sWS = 4, 6, 8, 10, 12, 16, 18, 20, 22, 24, 26
    rK, rV, rWQ, rWO, rW1, rW3, rW2, rX, rWS, rFIN, rOUT = 28, 32, 36, 40, 44, 48, 52, 56, 60, 64, 68
    sH, sB, sS, sWAVE, sCB, sUNIT, sSLOT = 72, 73, 74, 75, 76, 77, 78
    sKoff, sVoff, sT0, sT1, sT2, sT3 = 79, 80, 81, 82, 83, 84
    sPLO, sPHI, sSCALE, sLOG2E, sCNT, sMB = 85, 86, 87, 88, 89, 90
    sFB, sFC = 91, 92
    sST = 94
    vLANE, vN, vG = 1, 2, 3
    vKV, vWQ, vWO, vW1, vW2, vT0, vT1, vT2, vT3 = 4, 5, 6, 7, 8, 9, 10, 11, 12
    vMAX, vLS, vSTAMP = 13, 14, 15
    vSEL = 16
    vQ = 24
    vA = 28
    vACC = 36
    vFA = 40
    vP = 56
    vT = 88
    vR = 120
    vM = 248
    def ring(slot): return vR + 4*slot
    def rng(b, n, p="v"): return "%s[%d:%d]" % (p, b, b+n-1)

    nstamp = [0]
    def stamp():
        if not stamps: return
        k = nstamp[0]; nstamp[0] += 1
        a("s_memrealtime s[%d:%d]" % (sST, sST+1))
        a("s_waitcnt lgkmcnt(0)")
        a("v_writelane_b32 v%d, s%d, %d" % (vSTAMP, sST, 2*k))
        a("v_writelane_b32 v%d, s%d, %d" % (vSTAMP, sST+1, 2*k+1))

    a("s_cmp_ge_u32 s2, 256")
    a("s_cbranch_scc1 L_end")
    a("s_load_dwordx16 s[4:19], s[0:1], 0")
    a("s_load_dwordx8 s[20:27], s[0:1], 64")
    if stamps:
        a("s_memrealtime s[96:97]")
        a("v_mov_b32 v%d, 0" % vSTAMP)
    a("s_and_b32 s%d, s2, 31" % sH)
    a("s_lshr_b32 s%d, s2, 7" % sB)
    a("s_bfe_u32 s%d, s2, 0x20005" % sS)
    a("v_lshrrev_b32 v%d, 6, v0" % vT0)
    a("v_and_b32 v%d, 63, v0" % vLANE)
    a("v_and_b32 v%d, 15, v0" % vN)
    a("v_readfirstlane_b32 s%d, v%d" % (sWAVE, vT0))
    a("v_bfe_u32 v%d, v0, 4, 2" % vG)
    a("s_lshl_b32 s%d, s%d, 7" % (sSLOT, sB))
    a("s_lshl_b32 s%d, s%d, 2" % (sT0, sH))
    a("s_add_u32 s%d, s%d, s%d" % (sSLOT, sSLOT, sT0))
    a("s_add_u32 s%d, s%d, s%d" % (sSLOT, sSLOT, sS))
    a("s_and_b32 s%d, s%d, 7" % (sT0, sH))
    a("s_lshr_b32 s%d, s%d, 3" % (sT1, sH))
    a("s_lshl_b32 s%d, s%d, 2" % (sT1, sT1))
    a("s_add_u32 s%d, s%d, s%d" % (sT1, sT1, sS))
    a("s_mul_i32 s%d, s%d, 11" % (sCB, sT0))
    a("s_cmp_eq_u32 s%d, 7" % sT0)
    a("s_cselect_b32 s%d, 76, s%d" % (sCB, sCB))
    a("s_add_u32 s%d, s%d, s%d" % (sCB, sCB, sT1))
    a("s_cmp_lt_u32 s%d, 6" % sT0)
    a("s_cselect_b32 s%d, 11, 10" % sT2)
    a("s_cmp_lt_u32 s%d, s%d" % (sT1, sT2))
    a("s_cselect_b32 s%d, 1, 0" % sUNIT)
    a("s_bfe_u32 s%d, s2, 0x10004" % sFB)
    a("s_and_b32 s%d, s2, 15" % sFC)
    a("v_lshlrev_b32 v%d, 12, v%d" % (vKV, vT0))
    a("v_lshl_add_u32 v%d, v%d, 4, v%d" % (vKV, vLANE, vKV))
    a("s_lshl_b32 s%d, s%d, 14" % (sT0, sS))
    a("v_add_u32 v%d, s%d, v%d" % (vKV, sT0, vKV))
    a("v_lshlrev_b32 v%d, 20, v%d" % (vWQ, vT0))
    a("v_lshl_add_u32 v%d, v%d, 18, v%d" % (vWQ, vG, vWQ))
    a("v_lshl_add_u32 v%d, v%d, 4, v%d" % (vWQ, vN, vWQ))
    a("s_lshl_b32 s%d, s%d, 11" % (sT0, sSLOT))
    a("s_mul_i32 s%d, s%d, 96" % (sT1, sB))
    a("s_add_u32 s%d, s%d, s%d" % (sT1, sT1, sCB))
    a("s_lshl_b32 s%d, s%d, 11" % (sT1, sT1))
    a("s_add_u32 s%d, s%d, %d" % (sT1, sT1, F_OFF))
    a("s_cmp_eq_u32 s%d, 1" % sUNIT)
    a("s_cselect_b32 s%d, s%d, 0x40000000" % (sT1, sT1))
    a("s_mov_b32 s%d, s%d" % (sT3, sT1))
    a("s_sub_u32 s%d, s%d, 2048" % (sT1, sT1))
    a("s_cmp_lt_u32 s%d, 2" % sWAVE)
    a("s_cselect_b32 s%d, s%d, s%d" % (sT1, sT0, sT1))
    a("v_lshlrev_b32 v%d, 4, v0" % vT1)
    a("v_add_u32 v%d, s%d, v%d" % (vT1, sT1, vT1))
    a("s_lshl_b32 s%d, s%d, 10" % (sT0, sB))
    a("v_lshlrev_b32 v%d, 4, v%d" % (vT2, vLANE))
    a("v_add_u32 v%d, s%d, v%d" % (vT2, sT0, vT2))
    for r in range(4):
        a("v_mov_b32 v%d, -1" % (vM+r))
    a("s_lshl_b32 s%d, s%d, 3" % (sT0, sSLOT))
    a("s_add_u32 s%d, s%d, %d" % (sT0, sT0, ML_OFF))
    a("v_mov_b32 v%d, s%d" % (vT3, sT0))
    a("s_lshl_b32 s%d, s%d, 5" % (sT0, sB))
    a("s_add_u32 s%d, s%d, s%d" % (sT0, sT0, sH))
    a("s_lshl_b32 s%d, s%d, 22" % (sT0, sT0))
    a("s_add_u32 s%d, s%d, 0x300000" % (sT0, sT0))
    a("s_lshl_b32 s%d, s%d, 8" % (sT1, sH))
    for r, n in ((rK, 0x100000), (rV, 0x100000), (rX, 2048), (rWS, WS_SIZE), (rWO, 0x20000), (rOUT, 2048)):
        a("s_mov_b32 s%d, 0x%x" % (r+2, n))
    for r in (rK, rV, rWQ, rWO, rW1, rW3, rW2, rX, rWS, rFIN, rOUT):
        a("s_mov_b32 s%d, 0x20000" % (r+3))
    a("s_sub_u32 s%d, 0x400000, s%d" % (rWQ+2, sT1))
    a("s_mov_b32 s%d, 0" % sKoff)
    a("s_mov_b32 s%d, 0" % sVoff)
    a("s_waitcnt lgkmcnt(0)")
    a("s_mov_b32 s%d, s%d" % (rX, sX)); a("s_mov_b32 s%d, s%d" % (rX+1, sX+1))
    a.vmem("x", "buffer_load_dwordx4 %s, v%d, %s, 0 offen" % (rng(vM+4, 4), vT2, rng(rX, 4, "s")))
    a("s_add_u32 s%d, s%d, s%d" % (rWQ, sWQ, sT1)); a("s_addc_u32 s%d, s%d, 0" % (rWQ+1, sWQ+1))
    a("s_add_u32 s%d, s%d, s%d" % (rK, sK, sT0)); a("s_addc_u32 s%d, s%d, 0" % (rK+1, sK+1))
    a("s_mov_b32 s%d, s%d" % (rWS, sWS)); a("s_mov_b32 s%d, s%d" % (rWS+1, sWS+1))

    state = dict(k=0, v=0, wq=0, wo=0)
    def issue_k():
        j = state["k"]; state["k"] += 1
        assert j < 64
        a.vmem("k%d" % j, "buffer_load_dwordx4 %s, v%d, %s, s%d offen offset:%d %s" % (rng(ring(j % 32), 4), vKV, rng(rK, 4, "s"), sKoff, (j & 3)*1024, nt))
        if j & 3 == 3 and j != 63:
            a("s_add_u32 s%d, s%d, 0x10000" % (sKoff, sKoff))
    def issue_v():
        j = state["v"]; state["v"] += 1
        assert j < 64
        a.vmem("v%d" % j, "buffer_load_dwordx4 %s, v%d, %s, s%d offen offset:%d %s" % (rng(4*j, 4, "a"), vKV, rng(rV, 4, "s"), sVoff, (j & 3)*1024, nt))
        if j & 3 == 3 and j != 63:
            a("s_add_u32 s%d, s%d, 0x10000" % (sVoff, sVoff))
    def issue_wq():
        j = state["wq"]; state["wq"] += 1
        if j == 0:
            so = "0"
        else:
            a("s_mov_b32 s%d, 0x%x" % (sT2, j*8192)); so = "s%d" % sT2
        a.vmem("wq%d" % j, "buffer_load_dwordx4 %s, v%d, %s, %s offen" % (rng(128+4*j, 4, "a"), vWQ, rng(rWQ, 4, "s"), so))
    def issue_wo():
        j = state["wo"]; state["wo"] += 1
        ks, jj = divmod(j, 8)
        so = ks*32768 + (4096 if jj >= 4 else 0)
        if so:
            a("s_mov_b32 s%d, 0x%x" % (sT2, so)); sot = "s%d" % sT2
        else:
            sot = "0"
        a.vmem("wo%d" % j, "buffer_load_dwordx4 %s, v%d, %s, %s offen offset:%d" % (rng(ring(j), 4), vWO, rng(rWO, 4, "s"), sot, (jj & 3)*1024))

    nk = 0
    for j in range(32):
        issue_wq()
        if j == 1:
            a.vmem("clr0", "buffer_store_dwordx4 %s, v%d, %s, 0 offen sc1" % (rng(vM, 4), vT1, rng(rWS, 4, "s")))
            a("s_mov_b64 exec, 1")
            a.vmem("clr1", "buffer_store_dwordx2 %s, v%d, %s, 0 offen sc1" % (rng(vM, 2), vT3, rng(rWS, 4, "s")))
            a("s_mov_b64 exec, -1")
        while nk < (j+1)*K0//32:
            issue_k(); nk += 1
    a("s_add_u32 s%d, s%d, s%d" % (rV, sV, sT0)); a("s_addc_u32 s%d, s%d, 0" % (rV+1, sV+1))
    a("s_lshl_b32 s%d, s%d, 17" % (sT0, sH))
    a("s_add_u32 s%d, s%d, s%d" % (rWO, sWO, sT0)); a("s_addc_u32 s%d, s%d, 0" % (rWO+1, sWO+1))
    a("s_mov_b32 s%d, s%d" % (rW1, sW1)); a("s_mov_b32 s%d, s%d" % (rW1+1, sW1+1))
    a("s_mov_b32 s%d, s%d" % (rW3, sW3)); a("s_mov_b32 s%d, s%d" % (rW3+1, sW3+1))
    a("s_cmp_eq_u32 s%d, 1" % sUNIT)
    a("s_cselect_b32 s%d, %d, 0" % (rW1+2, 512*2752))
    a("s_cselect_b32 s%d, %d, 0" % (rW3+2, 512*2752))
    a("s_cselect_b32 s%d, 16384, 0" % (rW2+2))
    a("s_cselect_b32 s%d, s%d, 0" % (sT0, sCB))
    a("s_lshl_b32 s%d, s%d, 14" % (sT0, sT0))
    a("s_add_u32 s%d, s%d, s%d" % (rW2, sW2, sT0)); a("s_addc_u32 s%d, s%d, 0" % (rW2+1, sW2+1))
    a("s_mov_b32 s%d, s%d" % (rFIN, sWS)); a("s_mov_b32 s%d, s%d" % (rFIN+1, sWS+1))
    a("s_cmp_lt_u32 s2, 32")
    a("s_cselect_b32 s%d, 0x%x, 0" % (rFIN+2, WS_SIZE))
    a("s_mov_b32 s%d, s%d" % (rOUT, sOUT)); a("s_mov_b32 s%d, s%d" % (rOUT+1, sOUT+1))
    a("s_mov_b32 s%d, 0x05040100" % sPLO)
    a("s_mov_b32 s%d, 0x07060302" % sPHI)
    a("s_mov_b32 s%d, 0x%x" % (sSCALE, f2u(128 ** -0.5)))
    a("s_mov_b32 s%d, 0x%x" % (sLOG2E, f2u(1.4426950408889634)))
    a("s_lshl_b32 s%d, s%d, 8" % (sT0, sWAVE))
    a("v_lshl_add_u32 v%d, v%d, 4, s%d" % (vW2, vN, sT0))
    a("v_lshl_add_u32 v%d, v%d, 13, v%d" % (vWO, vG, vW2))
    a("v_lshl_add_u32 v%d, v%d, 12, v%d" % (vW2, vG, vW2))
    a("v_lshrrev_b32 v%d, 1, v%d" % (vT0, vLANE))
    a("s_lshl_b32 s%d, s%d, 7" % (sT0, sWAVE))
    a("v_add_u32 v%d, s%d, v%d" % (vT0, sT0, vT0))
    a("v_mul_u32_u24 v%d, 2752, v%d" % (vW1, vT0))
    a("v_and_b32 v%d, 1, v%d" % (vT1, vLANE))
    a("s_lshl_b32 s%d, s%d, 5" % (sT0, sCB))
    a("v_lshl_add_u32 v%d, v%d, 4, s%d" % (vT1, vT1, sT0))
    a("v_add_u32 v%d, v%d, v%d" % (vW1, vW1, vT1))
    for par in range(2):
        b0 = (0x0100 if par == 0 else 0x0302)
        for t in range(4):
            r = vSEL + 4*par + t
            a("v_mov_b32 v%d, 0x0c0c0c0c" % r)
            a("v_mov_b32 v%d, 0x%08x" % (vT1, 0x0c0c0000 | b0))
            a("v_cmp_eq_u32 vcc, %d, v%d" % (2*t, vN))
            a("v_mov_b32 v%d, 0x%08x" % (vT2, (b0 << 16) | 0x0c0c))
            a("s_nop 0")
            a("v_cndmask_b32 v%d, v%d, v%d, vcc" % (r, r, vT1))
            a("v_cmp_eq_u32 vcc, %d, v%d" % (2*t+1, vN))
            a("s_nop 1")
            a("v_cndmask_b32 v%d, v%d, v%d, vcc" % (r, r, vT2))
    stamp()
    xf = vP
    a.wait("x")
    for e in range(8):
        src = vM+4 + (e >> 1)
        if e & 1: a("v_and_b32 v%d, 0xffff0000, v%d" % (xf+e, src))
        else: a("v_lshlrev_b32 v%d, 16, v%d" % (xf+e, src))
    def wave_sum(r, sdst):
        for c in ("row_ror:8", "row_ror:4", "row_ror:2", "row_ror:1"):
            a("s_nop 1")
            a("v_add_f32_dpp v%d, v%d, v%d %s row_mask:0xf bank_mask:0xf" % (r, r, r, c))
        a("s_nop 1")
        a("v_add_f32_dpp v%d, v%d, v%d row_bcast:15 row_mask:0xa bank_mask:0xf" % (r, r, r))
        a("s_nop 1")
        a("v_add_f32_dpp v%d, v%d, v%d row_bcast:31 row_mask:0xc bank_mask:0xf" % (r, r, r))
        a("s_nop 0")
        a("v_readlane_b32 s%d, v%d, 63" % (sdst, r))
        a("s_nop 1")
    a("v_add_f32 v%d, v%d, v%d" % (vT0, xf, xf+1))
    a("v_add_f32 v%d, v%d, v%d" % (vT1, xf+2, xf+3))
    a("v_add_f32 v%d, v%d, v%d" % (vT2, xf+4, xf+5))
    a("v_add_f32 v%d, v%d, v%d" % (vT3, xf+6, xf+7))
    a("v_add_f32 v%d, v%d, v%d" % (vT0, vT0, vT1))
    a("v_add_f32 v%d, v%d, v%d" % (vT2, vT2, vT3))
    a("v_add_f32 v%d, v%d, v%d" % (vT0, vT0, vT2))
    wave_sum(vT0, sT0)
    a("v_mov_b32 v%d, 0x3b000000" % vT3)
    a("v_mul_f32 v%d, s%d, v%d" % (vT1, sT0, vT3))
    dd = xf + 8
    for e in range(8):
        a("v_sub_f32 v%d, v%d, v%d" % (dd+e, xf+e, vT1))
    a("v_mul_f32 v%d, v%d, v%d" % (vT0, dd, dd))
    for e in range(1, 8):
        a("v_fmac_f32 v%d, v%d, v%d" % (vT0, dd+e, dd+e))
    wave_sum(vT0, sT0)
    a("v_mul_f32 v%d, s%d, v%d" % (vT2, sT0, vT3))
    a("v_cvt_pk_bf16_f32 v%d, v%d, v%d" % (vT0, vT1, vT2))
    a("v_lshlrev_b32 v%d, 16, v%d" % (vT1, vT0))
    a("v_and_b32 v%d, 0xffff0000, v%d" % (vT2, vT0))
    a("v_add_f32 v%d, 0x%x, v%d" % (vT2, f2u(1e-5), vT2))
    a("v_cvt_pk_bf16_f32 v%d, v%d, v%d" % (vT2, vT2, vT2))
    a("v_lshlrev_b32 v%d, 16, v%d" % (vT2, vT2))
    a("v_sqrt_f32 v%d, v%d" % (vT2, vT2))
    a("s_nop 0")
    a("v_cvt_pk_bf16_f32 v%d, v%d, v%d" % (vT2, vT2, vT2))
    a("v_lshlrev_b32 v%d, 16, v%d" % (vT2, vT2))
    a("v_rcp_f32 v%d, v%d" % (vT3, vT2))
    for e in range(8):
        a("v_sub_f32 v%d, v%d, v%d" % (dd+e, xf+e, vT1))
    for e in range(0, 8, 2):
        a("v_cvt_pk_bf16_f32 v%d, v%d, v%d" % (xf+e, dd+e, dd+e+1))
    for e in range(0, 8, 2):
        a("v_lshlrev_b32 v%d, 16, v%d" % (dd+e, xf+e))
        a("v_and_b32 v%d, 0xffff0000, v%d" % (dd+e+1, xf+e))
    for e in range(8):
        a("v_mul_f32 v%d, v%d, v%d" % (xf+e, dd+e, vT3))
    for e in range(8):
        a("v_fma_f32 v%d, -v%d, v%d, v%d" % (dd+e, xf+e, vT2, dd+e))
    for e in range(8):
        a("v_fmac_f32 v%d, v%d, v%d" % (xf+e, dd+e, vT3))
    for e in range(4):
        a("v_cvt_pk_bf16_f32 v%d, v%d, v%d" % (vM+4+e, xf+2*e, xf+2*e+1))
    a("v_lshlrev_b32 v%d, 4, v0" % vT0)
    a("ds_write_b128 v%d, %s offset:%d" % (vT0, rng(vM+4, 4), L_XN))
    a("s_mul_i32 s%d, s%d, 1280" % (sT0, sWAVE))
    a("v_lshl_add_u32 v%d, v%d, 6, s%d" % (vT1, vG, sT0))
    a("v_and_b32 v%d, 62, v%d" % (vT2, vLANE))
    a("v_add_u32 v%d, s%d, v%d" % (vT2, sT0, vT2))
    XA = vT
    a("s_waitcnt lgkmcnt(0)")
    for c in range(4):
        a("ds_read_b128 %s, v%d offset:%d" % (rng(XA+4*c, 4), vT1, L_XN + 16*c))
    fx = vM
    for t in range(4):
        a("ds_read_u16 v%d, v%d offset:%d" % (fx+t, vT2, L_XN + 64*t))
    for r in range(4):
        a("v_mov_b32 v%d, 0" % (vACC+r))
    a("s_waitcnt lgkmcnt(0)")
    for t in range(4):
        a("v_lshlrev_b32 v%d, 16, v%d" % (fx+4+t, fx+t))
    stamp()
    def mkA(buf, src, par):
        for t in range(4):
            a("v_perm_b32 v%d, v%d, v%d, v%d" % (vA+4*buf+t, src, src, vSEL+4*par+t))
    mkA(0, XA, 0)
    for j in range(32):
        if j + 1 < 32:
            mkA((j+1) & 1, XA + ((j+1) >> 1), (j+1) & 1)
        else:
            a("s_nop 1")
        a.wait("wq%d" % j)
        a("v_mfma_f32_16x16x32_bf16 %s, %s, %s, %s" % (rng(vACC, 4), rng(vA+4*(j & 1), 4), rng(128+4*j, 4, "a"), rng(vACC, 4)))
        if state["k"] < 32 and (j & 1):
            issue_k()
    while state["k"] < 32:
        issue_k()
    for m, r in ((0, rW1), (1, rW3)):
        for t in range(4):
            if t:
                a("s_mov_b32 s%d, %d" % (sT2, t*32*2752)); so = "s%d" % sT2
            else:
                so = "0"
            a.vmem("w13_%d_%d" % (m, t), "buffer_load_dwordx4 %s, v%d, %s, %s offen" % (rng(vT+16*m+4*t, 4), vW1, rng(r, 4, "s"), so))
    a("v_lshlrev_b32 v%d, 5, v%d" % (vT0, vN))
    a("v_lshl_add_u32 v%d, v%d, 4, v%d" % (vT0, vG, vT0))
    a("s_lshl_b32 s%d, s%d, 9" % (sT0, sWAVE))
    a("v_add_u32 v%d, s%d, v%d" % (vT0, sT0, vT0))
    a("v_lshlrev_b32 v%d, 5, v%d" % (vT1, vN))
    a("s_mov_b32 exec_lo, -1"); a("s_mov_b32 exec_hi, 0")
    a("ds_write_b128 v%d, %s offset:%d" % (vT0, rng(vACC, 4), L_QP))
    a("s_mov_b64 exec, -1")
    a("s_waitcnt lgkmcnt(0)")
    a("s_barrier")
    a("s_cmp_eq_u32 s%d, 0" % sWAVE)
    a("s_cselect_b64 exec, 1, 0")
    a("s_lshl_b32 s%d, s%d, 7" % (sT0, sB))
    a("v_mov_b32 v%d, s%d" % (vT2, sT0))
    a("v_mov_b32 v%d, 1" % vT3)
    a("s_cbranch_execz L_noinc")
    a("global_atomic_add v%d, v%d, s[%d:%d] sc1" % (vT2, vT3, sDBG, sDBG+1))
    a.label("L_noinc")
    a("s_mov_b64 exec, -1")
    qt = vP
    for w in range(4):
        a("ds_read_b128 %s, v%d offset:%d" % (rng(qt+8*w, 4), vT1, L_QP + 512*w))
        a("ds_read_b128 %s, v%d offset:%d" % (rng(qt+8*w+4, 4), vT1, L_QP + 512*w + 16))
    a("v_mov_b32 v%d, 0xff800000" % vMAX)
    a("s_waitcnt lgkmcnt(0)")
    for e in range(8):
        a("v_add_f32 v%d, v%d, v%d" % (qt+e, qt+e, qt+8+e))
        a("v_add_f32 v%d, v%d, v%d" % (qt+16+e, qt+16+e, qt+24+e))
    for e in range(8):
        a("v_add_f32 v%d, v%d, v%d" % (qt+e, qt+e, qt+16+e))
    for e in range(4):
        a("v_cvt_pk_bf16_f32 v%d, v%d, v%d" % (vQ+e, qt+2*e, qt+2*e+1))
    stamp()
    for t in range(4):
        a.vmem("w2_%d" % t, "buffer_load_dwordx4 %s, v%d, %s, 0 offen offset:%d" % (rng(240+4*t, 4, "a"), vW2, rng(rW2, 4, "s"), t*1024))
    tt = [vT0, vT1, vT2, vT3]
    def ffn1():
        for e in range(16):
            pass
        for m in range(2):
            for t in range(4):
                a.wait("w13_%d_%d" % (m, t))
                for e in range(8):
                    W = vT + 16*m + 4*t + (e >> 1)
                    xs = fx + t + (4 if e & 1 else 0)
                    c = "0" if t == 0 else "v%d" % (vFA+8*m+e)
                    a("v_dot2_f32_bf16 v%d, v%d, v%d, %s" % (vFA+8*m+e, W, xs, c))
        a("s_nop 1")
        for c in ("quad_perm:[2,3,0,1]", "row_ror:4", "row_ror:8"):
            for e in range(16):
                a("v_add_f32_dpp v%d, v%d, v%d %s row_mask:0xf bank_mask:0xf" % (vFA+e, vFA+e, vFA+e, c))
        a("s_lshl_b32 s%d, s%d, 9" % (sT0, sWAVE))
        a("v_lshl_add_u32 v%d, v%d, 7, s%d" % (vM, vG, sT0))
        a("v_lshl_add_u32 v%d, v%d, 5, v%d" % (vM, vN, vM))
        a("s_mov_b32 exec_lo, 0x00030003")
        a("s_mov_b32 exec_hi, 0x00030003")
        for m in range(2):
            for c in range(2):
                a("ds_write_b128 v%d, %s offset:%d" % (vM, rng(vFA+8*m+4*c, 4), L_FP + 64*m + 16*c))
        a("s_mov_b64 exec, -1")
    for T in range(16):
        for d in range(4):
            for u in range(4):
                j = 4*T + u
                if d == 0:
                    a.wait("k%d" % j)
                c = "0" if d == 0 else "v%d" % tt[u]
                a("v_dot2_f32_bf16 v%d, v%d, v%d, %s" % (tt[u], ring(j % 32)+d, vQ+d, c))
        for u in range(4):
            if state["k"] < 64:
                issue_k()
            else:
                issue_v()
                if u & 1:
                    issue_wo()
        for c in ("row_ror:8", "row_ror:4", "row_ror:2", "row_ror:1"):
            for u in range(4):
                a("v_add_f32_dpp v%d, v%d, v%d %s row_mask:0xf bank_mask:0xf" % (tt[u], tt[u], tt[u], c))
        a("v_max3_f32 v%d, v%d, v%d, v%d" % (vMAX, tt[0], tt[1], vMAX))
        a("v_max3_f32 v%d, v%d, v%d, v%d" % (vMAX, tt[2], tt[3], vMAX))
        a("v_cvt_pk_bf16_f32 v%d, v%d, v%d" % (tt[1], tt[0], tt[1]))
        a("v_cvt_pk_bf16_f32 v%d, v%d, v%d" % (tt[3], tt[2], tt[3]))
        a("v_lshlrev_b32 v%d, 16, v%d" % (tt[0], tt[1]))
        a("v_lshlrev_b32 v%d, 16, v%d" % (tt[2], tt[3]))
        a("v_and_b32 v%d, 0xffff0000, v%d" % (tt[1], tt[1]))
        a("v_and_b32 v%d, 0xffff0000, v%d" % (tt[3], tt[3]))
        for u in range(4):
            a("v_mul_f32 v%d, s%d, v%d" % (tt[u], sSCALE, tt[u]))
        a("v_cvt_pk_bf16_f32 v%d, v%d, v%d" % (vP+2*T, tt[0], tt[1]))
        a("v_cvt_pk_bf16_f32 v%d, v%d, v%d" % (vP+2*T+1, tt[2], tt[3]))
        if T == 8:
            ffn1()
    assert state["wo"] == 16
    stamp()
    a("s_lshl_b32 s%d, s%d, 4" % (sT0, sWAVE))
    a("v_lshl_add_u32 v%d, v%d, 2, s%d" % (vT0, vG, sT0))
    a("ds_write_b32 v%d, v%d offset:%d" % (vT0, vMAX, L_MX))
    a("v_mov_b32 v%d, 0" % vT1)
    a("v_lshlrev_b32 v%d, 2, v%d" % (vT2, vN))
    a("s_waitcnt lgkmcnt(0)")
    a("s_barrier")
    mx = vT
    for c in range(4):
        a("ds_read_b128 %s, v%d offset:%d" % (rng(mx+4*c, 4), vT1, L_MX + 16*c))
    a("s_waitcnt lgkmcnt(0)")
    a("v_max3_f32 v%d, v%d, v%d, v%d" % (vMAX, mx, mx+1, mx+2))
    for c in range(3, 15, 2):
        a("v_max3_f32 v%d, v%d, v%d, v%d" % (vMAX, vMAX, mx+c, mx+c+1))
    a("v_max_f32 v%d, v%d, v%d" % (vMAX, vMAX, mx+15))
    a("v_add_u32 v%d, %d, v%d" % (vT2, L_FP, vT2))
    a("v_add_u32 v%d, 1024, v%d" % (vT3, vT2))
    for p in range(16):
        a("ds_read2_b32 %s, v%d offset0:%d offset1:%d" % (rng(mx+2*p, 2), vT2 if p < 8 else vT3, 32*(p & 7), 32*(p & 7)+16))
        if p == 9:
            a("s_waitcnt lgkmcnt(4)")
    a("v_cvt_pk_bf16_f32 v%d, v%d, v%d" % (vMAX, vMAX, vMAX))
    a("v_lshlrev_b32 v%d, 16, v%d" % (vMAX, vMAX))
    a("v_mul_f32 v%d, s%d, v%d" % (vMAX, sSCALE, vMAX))
    a("v_cvt_pk_bf16_f32 v%d, v%d, v%d" % (vMAX, vMAX, vMAX))
    a("v_lshlrev_b32 v%d, 16, v%d" % (vMAX, vMAX))
    a("v_mul_f32 v%d, s%d, v%d" % (vMAX, sLOG2E, vMAX))
    a("s_waitcnt lgkmcnt(0)")
    for st in (16, 8, 4, 2):
        for e in range(st):
            a("v_add_f32 v%d, v%d, v%d" % (mx+e, mx+e, mx+st+e))
    a("v_cvt_pk_bf16_f32 v%d, v%d, v%d" % (mx, mx, mx+1))
    a("v_and_b32 v%d, 0xffff0000, v%d" % (mx+1, mx))
    a("v_lshlrev_b32 v%d, 16, v%d" % (mx, mx))
    a("v_mul_f32 v%d, s%d, v%d" % (mx+2, sLOG2E, mx))
    a("v_exp_f32 v%d, -v%d" % (mx+2, mx+2))
    a("s_nop 0")
    a("v_add_f32 v%d, 1.0, v%d" % (mx+2, mx+2))
    a("v_rcp_f32 v%d, v%d" % (mx+2, mx+2))
    a("s_nop 0")
    a("v_mul_f32 v%d, v%d, v%d" % (mx, mx, mx+2))
    a("v_cvt_pk_bf16_f32 v%d, v%d, v%d" % (mx, mx, mx))
    a("v_lshlrev_b32 v%d, 16, v%d" % (mx, mx))
    a("v_mul_f32 v%d, v%d, v%d" % (mx, mx, mx+1))
    a("v_cvt_pk_bf16_f32 v%d, v%d, v%d" % (mx, mx, mx))
    a("s_lshl_b32 s%d, s%d, 5" % (sT0, sWAVE))
    a("v_lshl_add_u32 v%d, v%d, 1, s%d" % (vT1, vN, sT0))
    a("ds_write_b16 v%d, v%d offset:%d" % (vT1, mx, L_H))
    a("v_lshl_add_u32 v%d, v%d, 3, s%d" % (vT1, vG, sT0))
    a("s_waitcnt lgkmcnt(0)")
    a("ds_read_b64 %s, v%d offset:%d" % (rng(mx+4, 2), vT1, L_H))
    a("v_mov_b32 v%d, 0" % vLS)
    for c in range(0, 32, 2):
        r0, r1 = vP + c, vP + c + 1
        a("v_lshlrev_b32 v%d, 16, v%d" % (tt[0], r0))
        a("v_and_b32 v%d, 0xffff0000, v%d" % (tt[1], r0))
        a("v_lshlrev_b32 v%d, 16, v%d" % (tt[2], r1))
        a("v_and_b32 v%d, 0xffff0000, v%d" % (tt[3], r1))
        for u in range(4):
            a("v_fma_f32 v%d, v%d, s%d, -v%d" % (tt[u], tt[u], sLOG2E, vMAX))
        for u in range(4):
            a("v_exp_f32 v%d, v%d" % (tt[u], tt[u]))
        a("v_add_f32 v%d, v%d, v%d" % (vLS, vLS, tt[0]))
        a("v_cvt_pk_bf16_f32 v%d, v%d, v%d" % (r0, tt[0], tt[1]))
        a("v_add_f32 v%d, v%d, v%d" % (tt[1], tt[1], tt[2]))
        a("v_add_f32 v%d, v%d, v%d" % (vLS, vLS, tt[3]))
        a("v_cvt_pk_bf16_f32 v%d, v%d, v%d" % (r1, tt[2], tt[3]))
        a("v_add_f32 v%d, v%d, v%d" % (vLS, vLS, tt[1]))
    a("s_lshl_b32 s%d, s%d, 4" % (sT0, sWAVE))
    a("v_lshl_add_u32 v%d, v%d, 2, s%d" % (vT0, vG, sT0))
    a("ds_write_b32 v%d, v%d offset:%d" % (vT0, vLS, L_LS))
    a("s_waitcnt lgkmcnt(0)")
    a("s_barrier")
    a("v_mov_b32 v%d, 0" % vT1)
    for c in range(4):
        a("ds_read_b128 %s, v%d offset:%d" % (rng(mx+8+4*c, 4), vT1, L_LS + 16*c))
    for t in range(4):
        mkA(t & 1, mx+4+(t >> 1), t & 1)
        a.wait("w2_%d" % t)
        a("s_nop 1")
        a("v_mfma_f32_16x16x32_bf16 %s, %s, %s, %s" % (rng(vACC, 4), rng(vA+4*(t & 1), 4), rng(240+4*t, 4, "a"), "0" if t == 0 else rng(vACC, 4)))
    a("v_lshlrev_b32 v%d, 5, v%d" % (vT0, vN))
    a("v_lshl_add_u32 v%d, v%d, 4, v%d" % (vT0, vG, vT0))
    a("s_lshl_b32 s%d, s%d, 9" % (sT0, sWAVE))
    a("s_add_u32 s%d, s%d, s%d" % (sT0, sT0, sT3))
    a("v_add_u32 v%d, s%d, v%d" % (vT0, sT0, vT0))
    a("s_waitcnt lgkmcnt(0)")
    for st in (8, 4, 2, 1):
        for e in range(st):
            a("v_add_f32 v%d, v%d, v%d" % (mx+8+e, mx+8+e, mx+8+st+e))
    for r in range(4):
        a("v_min_u32 v%d, -2, v%d" % (vM+r, vACC+r))
    a("v_min_u32 v%d, -2, v%d" % (vM+4, vMAX))
    a("v_min_u32 v%d, -2, v%d" % (vM+5, mx+8))
    a("s_lshl_b32 s%d, s%d, 3" % (sT0, sSLOT))
    a("s_add_u32 s%d, s%d, %d" % (sT0, sT0, ML_OFF))
    a("v_mov_b32 v%d, s%d" % (vT1, sT0))
    a("s_mov_b32 exec_lo, -1"); a("s_mov_b32 exec_hi, 0")
    a.vmem("pubF", "buffer_store_dwordx4 %s, v%d, %s, 0 offen sc1" % (rng(vM, 4), vT0, rng(rWS, 4, "s")))
    a("s_mov_b64 exec, 1")
    a.vmem("pubML", "buffer_store_dwordx2 %s, v%d, %s, 0 offen sc1" % (rng(vM+4, 2), vT1, rng(rWS, 4, "s")))
    a("s_mov_b64 exec, -1")
    for r in range(4):
        a("v_mov_b32 v%d, 0" % (vACC+r))
    stamp()
    WT = [vT, vR, vR+32, vR+64]
    yacc = vR + 96
    fS, fCG, fHH = None, None, None
    vML = vFA
    vF = vFA + 8
    fY, fXo = vQ, vQ+1
    vFL = [vM, vM+4, vFA+12]
    vW = vSEL
    def transpose(ks):
        src = vR + 32*ks
        dst = WT[ks]
        for aa in range(8):
            for d in range(4):
                a("v_perm_b32 v%d, v%d, v%d, s%d" % (dst+4*aa+d, src+4*(2*d+1)+(aa >> 1), src+4*(2*d)+(aa >> 1), sPHI if aa & 1 else sPLO))
    def fin_a():
        a("s_lshl_b32 s%d, s%d, 7" % (sT0, sFB))
        a("v_mov_b32 v%d, s%d" % (vQ+2, sT0))
        a.vmem("cnt", "global_load_dword v%d, v%d, s[%d:%d] sc1" % (vQ+3, vQ+2, sDBG, sDBG+1))
    def fin_b():
        a.wait("cnt")
        a("s_cmp_ge_u32 s2, 32")
        a("s_cbranch_scc1 L_cnt_ok")
        a("s_mov_b32 s%d, 0" % sCNT)
        a.label("L_cnt_chk")
        a("v_readfirstlane_b32 s%d, v%d" % (sT0, vQ+3))
        a("s_add_u32 s%d, s%d, 1" % (sCNT, sCNT))
        a("s_cmp_ge_u32 s%d, 128" % sT0)
        a("s_cbranch_scc1 L_cnt_ok")
        a("s_cmp_ge_u32 s%d, 0x40000" % sCNT)
        a("s_cbranch_scc1 L_cnt_ok")
        a("global_load_dword v%d, v%d, s[%d:%d] sc1" % (vQ+3, vQ+2, sDBG, sDBG+1))
        a("s_waitcnt vmcnt(0)")
        a("s_branch L_cnt_chk")
        a.label("L_cnt_ok")
        a("v_and_b32 v%d, 3, v0" % vT0)
        a("v_lshrrev_b32 v%d, 5, v0" % vT1)
        a("v_lshl_add_u32 v%d, v%d, 2, v%d" % (vT0, vT1, vT0))
        a("v_bfe_u32 v%d, v0, 2, 3" % vT1)
        a("s_lshl_b32 s%d, s%d, 7" % (sT0, sFC))
        a("v_lshl_add_u32 v%d, v%d, 4, s%d" % (vT1, vT1, sT0))
        a("v_lshl_add_u32 v%d, v%d, 11, v%d" % (vT1, vT0, vT1))
        a("s_lshl_b32 s%d, s%d, 18" % (sT0, sFB))
        a("v_add_u32 v%d, s%d, v%d" % (fY, sT0, vT1))
        a("s_mul_i32 s%d, s%d, %d" % (sT0, sFB, 96*2048))
        a("s_add_u32 s%d, s%d, %d" % (sT0, sT0, F_OFF))
        a("v_add_u32 v%d, s%d, v%d" % (vT1, sT0, vT1))
        a("v_add_u32 v%d, 0x20000, v%d" % (vT2, vT1))
        a("v_cmp_gt_u32 vcc, 22, v%d" % vT0)
        a("s_lshl_b32 s%d, s%d, 10" % (sT0, sFB))
        a("s_add_u32 s%d, s%d, %d" % (sT0, sT0, ML_OFF))
        a("v_lshl_add_u32 v%d, v%d, 3, s%d" % (vT0, vT0, sT0))
        a("v_mov_b32 v%d, 0x40000000" % vT3)
        a("v_cndmask_b32 v%d, v%d, v%d, vcc" % (vT2, vT3, vT2))
        a("s_mov_b32 s%d, 0x10000" % sT0)
        fin_b_loads(True)
        a("s_lshl_b32 s%d, s%d, 10" % (sT1, sFB))
        a("s_lshl_b32 s%d, s%d, 6" % (sT2, sFC))
        a("s_add_u32 s%d, s%d, s%d" % (sT1, sT1, sT2))
        a("v_lshl_add_u32 v%d, v%d, 1, s%d" % (fXo, vLANE, sT1))
        a.vmem("fx", "buffer_load_ushort v%d, v%d, %s, 0 offen" % (vQ+2, fXo, rng(rX, 4, "s")))
    def fin_b_loads(count):
        ins = []
        for k in range(4):
            ins.append(("ml%d" % k, "buffer_load_dwordx2 %s, v%d, %s, 0 offen offset:%d sc1" % (rng(vML+2*k, 2), vT0, rng(rFIN, 4, "s"), 256*k)))
        ins.append(("f0", "buffer_load_dwordx4 %s, v%d, %s, 0 offen sc1" % (rng(vFL[0], 4), vT1, rng(rFIN, 4, "s"))))
        ins.append(("f1", "buffer_load_dwordx4 %s, v%d, %s, s%d offen sc1" % (rng(vFL[1], 4), vT1, rng(rFIN, 4, "s"), sT0)))
        ins.append(("f2", "buffer_load_dwordx4 %s, v%d, %s, 0 offen sc1" % (rng(vFL[2], 4), vT2, rng(rFIN, 4, "s"))))
        for tag, t in ins:
            if count: a.vmem(tag, t)
            else: a(t)
    def fin_c():
        a.wait("fx")
        a("s_cmp_ge_u32 s2, 32")
        a("s_cbranch_scc1 L_pre_done")
        a("s_mov_b32 s%d, 0" % sCNT)
        a.label("L_pre_chk")
        regs = [vML+e for e in range(8)] + [r+e for r in vFL for e in range(4)]
        a("v_max3_u32 v%d, v%d, v%d, v%d" % (vT3, regs[0], regs[1], regs[2]))
        for e in range(3, 19, 2):
            a("v_max3_u32 v%d, v%d, v%d, v%d" % (vT3, vT3, regs[e], regs[e+1]))
        a("v_max_u32 v%d, v%d, v%d" % (vT3, vT3, regs[19]))
        a("v_cmp_eq_u32 vcc, -1, v%d" % vT3)
        a("s_add_u32 s%d, s%d, 1" % (sCNT, sCNT))
        a("s_cbranch_vccz L_pre_ok")
        a("s_cmp_ge_u32 s%d, 0x40000" % sCNT)
        a("s_cbranch_scc1 L_pre_ok")
        a("s_mov_b32 s%d, 0x10000" % sT0)
        fin_b_loads(False)
        a("s_waitcnt vmcnt(0)")
        a("s_branch L_pre_chk")
        a.label("L_pre_ok")
        for e in range(4):
            a("v_add_f32 v%d, v%d, v%d" % (vF+e, vFL[0]+e, vFL[1]+e))
        for e in range(4):
            a("v_add_f32 v%d, v%d, v%d" % (vF+e, vF+e, vFL[2]+e))
        q1 = "quad_perm:[1,0,3,2] row_mask:0xf bank_mask:0xf"
        q2 = "quad_perm:[2,3,0,1] row_mask:0xf bank_mask:0xf"
        for k in range(4):
            a("v_max_f32_dpp v%d, v%d, v%d %s" % (vM+k, vML+2*k, vML+2*k, q1))
        for k in range(4):
            a("v_max_f32_dpp v%d, v%d, v%d %s" % (vM+k, vM+k, vM+k, q2))
        for k in range(4):
            a("v_sub_f32 v%d, v%d, v%d" % (vML+2*k, vML+2*k, vM+k))
        for k in range(4):
            a("v_exp_f32 v%d, v%d" % (vML+2*k, vML+2*k))
        for k in range(4):
            a("v_mul_f32 v%d, v%d, v%d" % (vML+2*k+1, vML+2*k+1, vML+2*k))
        for k in range(4):
            a("v_add_f32_dpp v%d, v%d, v%d %s" % (vML+2*k+1, vML+2*k+1, vML+2*k+1, q1))
        for k in range(4):
            a("v_add_f32_dpp v%d, v%d, v%d %s" % (vML+2*k+1, vML+2*k+1, vML+2*k+1, q2))
        for k in range(4):
            a("v_rcp_f32 v%d, v%d" % (vML+2*k+1, vML+2*k+1))
        for k in range(4):
            a("v_mul_f32 v%d, v%d, v%d" % (vML+2*k, vML+2*k, vML+2*k+1))
        a("v_lshlrev_b32 v%d, 16, v%d" % (vQ+2, vQ+2))
        a.label("L_pre_done")
    mkA(0, vP, 0)
    for j in range(64):
        if j + 1 < 64:
            mkA((j+1) & 1, vP + ((j+1) >> 1), (j+1) & 1)
        else:
            a("s_nop 1")
        a.wait("v%d" % j)
        a("v_mfma_f32_16x16x32_bf16 %s, %s, %s, %s" % (rng(vACC, 4), rng(vA+4*(j & 1), 4), rng(4*j, 4, "a"), rng(vACC, 4)))
        if state["v"] < 64:
            issue_v()
        if state["wo"] < 32:
            issue_wo()
        if j == 8: fin_a()
        if j == 30: fin_b()
        if j in (36, 40, 44, 48):
            ks = (j - 36)//4
            a.wait("wo%d" % (8*ks+7))
            transpose(ks)
        if j == 56: fin_c()
    stamp()
    a("s_mul_i32 s%d, s%d, 320" % (sT0, sWAVE))
    a("v_lshl_add_u32 v%d, v%d, 4, s%d" % (vT0, vN, sT0))
    a("v_lshl_add_u32 v%d, v%d, 3, v%d" % (vT0, vG, vT0))
    a("v_and_b32 v%d, 3, v%d" % (vT1, vLANE))
    a("v_mul_u32_u24 v%d, 320, v%d" % (vT1, vT1))
    a("v_lshl_add_u32 v%d, v%d, 4, v%d" % (vT1, vG, vT1))
    a("s_lshl_b32 s%d, s%d, 11" % (sT0, sSLOT))
    a("s_lshl_b32 s%d, s%d, 9" % (sT1, sWAVE))
    a("s_add_u32 s%d, s%d, s%d" % (sT0, sT0, sT1))
    a("v_lshl_add_u32 v%d, v%d, 5, s%d" % (vT2, vN, sT0))
    a("v_lshl_add_u32 v%d, v%d, 4, v%d" % (vT2, vG, vT2))
    a("v_cvt_pk_bf16_f32 v%d, v%d, v%d" % (vA, vACC, vACC+1))
    a("v_cvt_pk_bf16_f32 v%d, v%d, v%d" % (vA+1, vACC+2, vACC+3))
    a("s_mov_b32 exec_lo, -1"); a("s_mov_b32 exec_hi, 0")
    a("ds_write_b64 v%d, %s offset:%d" % (vT0, rng(vA, 2), L_OP))
    a("s_mov_b64 exec, -1")
    a("v_cmp_eq_u32 vcc, 1, v%d" % vG)
    a("s_waitcnt lgkmcnt(0)")
    a("s_barrier")
    oa = vP
    for ks in range(4):
        a("ds_read_b128 %s, v%d offset:%d" % (rng(oa+4*ks, 4), vT1, L_OP + 64*ks))
    for ks in range(4):
        a("s_waitcnt lgkmcnt(%d)" % (3-ks))
        for aa in range(8):
            a("v_mfma_f32_16x16x32_bf16 %s, %s, %s, %s" % (rng(yacc+4*aa, 4), rng(oa+4*ks, 4), rng(WT[ks]+4*aa, 4), "0" if ks == 0 else rng(yacc+4*aa, 4)))
    a("s_nop 0")
    for aa in range(8):
        a("v_pk_add_f32 %s, %s, %s" % (rng(yacc+4*aa, 2), rng(yacc+4*aa, 2), rng(yacc+4*aa+2, 2)))
    for aa in range(8):
        a("v_add_f32 v%d, v%d, v%d" % (yacc+4*aa, yacc+4*aa, yacc+4*aa+1))
    for e in range(4):
        a("v_cndmask_b32 v%d, v%d, v%d, vcc" % (oa+e, yacc+4*e, yacc+4*(e+4)))
    for e in range(4):
        a("v_min_u32 v%d, -2, v%d" % (oa+e, oa+e))
    a("s_mov_b32 exec_lo, -1"); a("s_mov_b32 exec_hi, 0")
    a.vmem("pubY", "buffer_store_dwordx4 %s, v%d, %s, 0 offen sc1" % (rng(oa, 4), vT2, rng(rWS, 4, "s")))
    a("s_mov_b64 exec, -1")
    stamp()
    a("s_cmp_ge_u32 s2, 32")
    a("s_cbranch_scc1 L_fin_done")
    yl = vT
    a("s_mov_b32 s%d, 0" % sCNT)
    a("s_mov_b32 s%d, 0x10000" % sT0)
    a("s_mov_b32 s%d, 0x20000" % sT1)
    a("s_mov_b32 s%d, 0x30000" % sT2)
    a.label("L_poll")
    for k, so in enumerate(("0", "s%d" % sT0, "s%d" % sT1, "s%d" % sT2)):
        a("buffer_load_dwordx4 %s, v%d, %s, %s offen sc1" % (rng(yl+4*k, 4), fY, rng(rFIN, 4, "s"), so))
    a("s_add_u32 s%d, s%d, 1" % (sCNT, sCNT))
    a("s_waitcnt vmcnt(0)")
    a("v_max3_u32 v%d, v%d, v%d, v%d" % (vT3, yl, yl+1, yl+2))
    for e in range(3, 15, 2):
        a("v_max3_u32 v%d, v%d, v%d, v%d" % (vT3, vT3, yl+e, yl+e+1))
    a("v_max_u32 v%d, v%d, v%d" % (vT3, vT3, yl+15))
    a("s_cmp_ge_u32 s%d, 0x40000" % sCNT)
    a("s_cbranch_scc1 L_poll_done")
    a("v_cmp_eq_u32 vcc, -1, v%d" % vT3)
    a("s_and_b64 exec, exec, vcc")
    a("s_cbranch_scc1 L_poll")
    a.label("L_poll_done")
    a("s_mov_b64 exec, -1")
    stamp()
    for k in range(4):
        for e in range(4):
            a("v_fmac_f32 v%d, v%d, v%d" % (vF+e, yl+4*k+e, vML+2*k))
    a("v_lshrrev_b32 v%d, 5, v0" % vT0)
    a("v_bfe_u32 v%d, v0, 2, 3" % vT1)
    for c in ("quad_perm:[1,0,3,2]", "quad_perm:[2,3,0,1]"):
        for e in range(4):
            a("v_add_f32_dpp v%d, v%d, v%d %s row_mask:0xf bank_mask:0xf" % (vF+e, vF+e, vF+e, c))
    a("v_lshlrev_b32 v%d, 7, v%d" % (vT0, vT0))
    a("v_lshl_add_u32 v%d, v%d, 4, v%d" % (vT0, vT1, vT0))
    a("v_lshlrev_b32 v%d, 2, v%d" % (vT1, vLANE))
    a("s_mov_b32 exec_lo, 0x11111111")
    a("s_mov_b32 exec_hi, 0x11111111")
    a("ds_write_b128 v%d, %s offset:%d" % (vT0, rng(vF, 4), L_FIN))
    a("s_mov_b32 exec_lo, -1"); a("s_mov_b32 exec_hi, 0")
    a("s_waitcnt lgkmcnt(0)")
    a("s_barrier")
    a("s_cmp_lg_u32 s%d, 0" % sWAVE)
    a("s_cbranch_scc1 L_fin_done")
    for p in range(8):
        a("ds_read_b32 v%d, v%d offset:%d" % (yl+p, vT1, L_FIN + 128*p))
    a("s_waitcnt lgkmcnt(0)")
    for st in (4, 2, 1):
        for e in range(st):
            a("v_add_f32 v%d, v%d, v%d" % (yl+e, yl+e, yl+st+e))
    a("v_add_f32 v%d, v%d, v%d" % (yl, yl, vQ+2))
    a("v_cvt_pk_bf16_f32 v%d, v%d, v%d" % (yl, yl, yl))
    a("buffer_store_short v%d, v%d, %s, 0 offen" % (yl, fXo, rng(rOUT, 4, "s")))
    a.label("L_fin_done")
    if stamps:
        a("s_mov_b64 exec, -1")
        stamp()
        ns = nstamp[0] + 1
        a("v_writelane_b32 v%d, s96, %d" % (vSTAMP, 2*ns-2))
        a("v_writelane_b32 v%d, s97, %d" % (vSTAMP, 2*ns-1))
        a("s_lshl_b32 s%d, s2, 2" % sT0)
        a("s_add_u32 s%d, s%d, s%d" % (sT0, sT0, sWAVE))
        a("s_mul_i32 s%d, s%d, %d" % (sT0, sT0, ns*8))
        a("v_add_u32 v%d, 2, v%d" % (vT0, vLANE))
        a("v_cmp_le_u32 vcc, %d, v%d" % (2*ns, vT0))
        a("v_subrev_u32 v%d, %d, v%d" % (vT1, 2*ns, vT0))
        a("s_nop 0")
        a("v_cndmask_b32 v%d, v%d, v%d, vcc" % (vT0, vT0, vT1))
        a("v_lshl_add_u32 v%d, v%d, 2, s%d" % (vT0, vT0, sT0))
        a("s_add_u32 s%d, s%d, 0x%x" % (sWS, sWS, STAMP_OFF))
        a("s_addc_u32 s%d, s%d, 0" % (sWS+1, sWS+1))
        a("v_cmp_gt_u32 vcc, %d, v%d" % (2*ns, vLANE))
        a("s_and_saveexec_b64 s[%d:%d], vcc" % (sST, sST+1))
        a("global_store_dword v%d, v%d, s[%d:%d]" % (vT0, vSTAMP, sWS, sWS+1))
        print("stamps per record:", ns, file=sys.stderr)
    a.label("L_end")
    a("s_endpgm")
    print("max outstanding vmem:", a.maxout, "lines", len(a.l), file=sys.stderr)
    k = dict(name=NAME+"_kernel", body=a.text(), grid=256, block=256, lds=LDS_SIZE, vgpr=512, sgpr=102, accum=256)
    open(fn, "w").write(kernel_file([k]))
    return fn

if __name__ == "__main__":
    print(gen("k1.s"), gen("k1_st.s", stamps=True))
```
